```python
import torch

def _softmax(x, axis=-1):
    return torch.softmax(x, dim=axis)
def _gelu(x):
    return torch.nn.functional.gelu(x, approximate="tanh")
def _silu(x):
    return torch.nn.functional.silu(x)
def _sigmoid(x):
    return torch.sigmoid(x)
def _layernorm(x, axis=-1, eps=1e-5):
    m = x.mean(dim=axis, keepdim=True)
    v = x.var(dim=axis, keepdim=True, unbiased=False)
    return (x - m) / torch.sqrt(v + eps)
def _scatter_add(tgt, idx, src, axis=0):
    return tgt.clone().index_add_(axis, idx, src)
def _segment_sum(src, seg, n):
    out = torch.zeros((n,) + src.shape[1:], dtype=src.dtype)
    return out.index_add_(0, seg, src)
def _pad(x, pw):
    flat = tuple(v for pair in reversed(pw) for v in pair)
    return torch.nn.functional.pad(x, flat)

kernel_name = 'standalone__deep_cross_xdeepfm__recsys'

def setup_inputs():

    _w = (lambda a: (lambda t: t.to(torch.bfloat16) if t.is_floating_point() else t)(torch.as_tensor(a)))
    B, F, D, L = 16384, 26, 16, 3
    V = min(1000, 100000)
    Din = F * D
    return {
        "idx": _w((lambda lo, hi, *s: torch.randint(lo, hi, s))(0, V, B, F).to(torch.int64)),
        "table": _w((lambda *s: torch.randn(*s, dtype=torch.bfloat16) * 0.8)(V, D)),
        "ws_cin": _w((lambda *s: torch.randn(*s, dtype=torch.bfloat16) * 0.2)(L, F, F, F) * (1.0 / F)),
        "w_cin_out": _w((lambda *s: torch.randn(*s, dtype=torch.bfloat16) * 0.2)(L * F) * ((L * F) ** -0.5)),
        "w_dnn1": _w((lambda *s: torch.randn(*s, dtype=torch.bfloat16) * 0.8)(Din, Din) * (Din ** -0.5)),
        "b_dnn1": _w((lambda *s: torch.randn(*s, dtype=torch.bfloat16) * 3.2)(Din) * 0.1),
        "w_dnn2": _w((lambda *s: torch.randn(*s, dtype=torch.bfloat16) * 0.2)(Din) * (Din ** -0.5)),
        "b_out": _w((lambda *s: torch.randn(*s, dtype=torch.bfloat16) * 0.2)(1)),
    }

def reference(idx, table, ws_cin, w_cin_out, w_dnn1, b_dnn1, w_dnn2, b_out):
    x0 = table[idx]
    B = x0.shape[0]
    L = ws_cin.shape[0]
    xk = x0
    pooled = []
    for l in range(L):
        xk = torch.einsum('bid,bjd,hij->bhd', xk, x0, ws_cin[l])
        pooled.append(xk.sum(axis=-1))
    p_plus = torch.stack(pooled, axis=1).reshape(B, -1)
    logit_cin = p_plus @ w_cin_out
    h = x0.reshape(B, -1)
    h = _gelu(h @ w_dnn1 + b_dnn1)
    logit_dnn = h @ w_dnn2
    return logit_cin + logit_dnn + b_out
```

```python
import numpy as np, itertools, random

PAIRS = {0:("X0","X1"),1:("X2","X3"),2:("X4","X5"),3:("X6","X7"),4:("X8","X9"),5:("X10","X11"),
         7:("B0","B1"),8:("B2","B3"),9:("B4","B5"),6:("X12","B6")}
PAIR_OF = {r:t for t,rs in PAIRS.items() for r in rs}
def field(t, r, h):
    if t < 6: return 4*t + r
    if t == 6: return [24, 25, 24+h, 26][r]
    return 8*(t-7) + 2*r + h

def unit_id(P, Q):
    assert P > Q
    return [(p,q) for p in range(6) for q in range(p)].index((P,Q))

STEPS = {}
for P in range(6):
    for Q in range(P):
        STEPS[f"u{unit_id(P,Q)}"] = [("lo",f"B{P}",f"X{2*Q}"),("lo",f"B{P}",f"X{2*Q+1}"),("hi",f"B{P}",f"X{2*Q}"),("hi",f"B{P}",f"X{2*Q+1}")]
for e in range(3):
    STEPS[f"u{15+e}"] = [("lo","B6",f"X{4*e+i}") for i in range(4)]
for e in range(3):
    STEPS[f"s{e}"] = [("el",f"B{2*e}",f"B{2*e}"),("el",f"B{2*e+1}",f"B{2*e+1}"),("lo",f"B{2*e+1}",f"X{4*e+3}"),("adj",f"B{2*e}",f"B{2*e+1}")]
STEPS["s3"] = [("lo","B0","X1"),("lo","B2","X5"),("lo","B4","X9"),("lo","B6","X12")]
LIN = {"l0":["B0","B1","B2","B3"], "l1":["B4","B5","X12","B6"]}

def granule_addr(u, Q):
    if u > 25 or Q > 6: return None
    P = u // 4
    if P < 6:
        if P > Q: return (unit_id(P,Q), (u>>1)&1)
        if P == Q: return (18+P, (u>>1)&1)
        return None
    if Q < 6: return (15 + Q//2, Q&1)
    return (24, 0)

def check():
    rng = np.random.default_rng(0)
    M = rng.standard_normal((26,26)); Ms = M + M.T
    U = rng.standard_normal(26); w1 = rng.standard_normal()
    x = rng.standard_normal(26); C = 3.0
    xe = np.append(x, C)
    Msp = np.zeros((32,32)); Msp[:26,:26] = Ms
    img = np.full((2,25,8), np.nan)
    for u in range(26):
        for Q in range(7):
            g = granule_addr(u,Q)
            if g: img[u&1, g[0], 4*g[1]:4*g[1]+4] = Msp[u, 4*Q:4*Q+4]
    regs = [{}, {}]
    for h in range(2):
        for t,(r0,r1) in PAIRS.items():
            regs[h][r0] = [xe[field(t,0,h)], xe[field(t,1,h)]]
            regs[h][r1] = [xe[field(t,2,h)], xe[field(t,3,h)]]
    tot = 0.0
    Up = np.zeros(28); Up[:26] = U
    for h in range(2):
        d = lambda unit,i: img[h,unit,2*i:2*i+2]
        W = {}
        for s in range(18): W[f"u{s}"] = [d(s,i) for i in range(4)]
        sq = lambda c: 0.5*np.array([d(18+c,0)[h], d(18+c,3)[h]])
        for e in range(3):
            c = 2*e + h
            W[f"s{e}"] = [sq(2*e), sq(2*e+1), d(18+2*e+1,1), np.array([d(18+c,0)[1-h], d(18+c,3)[1-h]])]
        W["s3"] = [d(18,1), d(20,1), d(22,1), 0.5*d(24,0)]
        for name, zs in STEPS.items():
            for i,(k,a,b) in enumerate(zs):
                A = regs[h][a]; Bv = regs[h][b]
                if k == "lo": z = [A[0]*Bv[0], A[0]*Bv[1]]
                elif k == "hi": z = [A[1]*Bv[0], A[1]*Bv[1]]
                elif k == "el": z = [A[0]*Bv[0], A[1]*Bv[1]]
                else:
                    na = regs[0][a] if h == 0 else regs[0][b]
                    nb = regs[1][a] if h == 0 else regs[1][b]
                    z = [na[0]*nb[0], na[1]*nb[1]]
                tot += np.dot(W[name][i], z)
        lw = lambda c: np.array([Up[4*c+h], Up[4*c+2+h]])
        for i,r in enumerate(LIN["l0"]): tot += np.dot(lw(i), regs[h][r])
        tot += np.dot(lw(4), regs[h]["B4"]) + np.dot(lw(5), regs[h]["B5"]) + np.dot([Up[24+h], (w1/C if h==0 else 0)], regs[h]["B6"])
    print(tot, x@M@x + U@x + w1)

def uses(name):
    if name in LIN: return {PAIR_OF[r] for r in LIN[name]}
    return {PAIR_OF[r] for z in STEPS[name] for r in z[1:]}

def windows(order):
    pos = []; t = 0
    for n in order:
        pos.append(t); t += 1 if n in LIN else 2
    T = t
    w = {}
    for p in PAIRS:
        us = [pos[i] for i,n in enumerate(order) if p in uses(n)]
        w[p] = T - (max(us) - min(us))
    return w
def valid(order):
    for e in range(3):
        i = order.index(f"s{e}")
        if any(7+e in uses(n) for n in order[i+1:]): return False
    return True
def search(seed=0, iters=200000):
    rnd = random.Random(seed)
    names = list(STEPS) + list(LIN)
    def score(o):
        if not valid(o): return -1e9
        w = sorted(windows(o).values())
        return w[0]*100 + w[1]*10 + sum(w)*0.1
    o = [n for n in names if not n.startswith("s")] + ["s3","s0","s1","s2"]
    best = o[:]; bs = cs = score(o)
    for it in range(iters):
        T = 50*(1-it/iters)+0.01
        n = o[:]
        i,j = rnd.randrange(len(n)), rnd.randrange(len(n))
        x = n.pop(i); n.insert(j,x)
        s = score(n)
        if s > cs or rnd.random() < np.exp((s-cs)/T):
            o, cs = n, s
            if s > bs: best, bs = n[:], s
    return best, windows(best)
if __name__ == "__main__":
    check()
    for sd in range(3): print(search(sd, 60000))
```

```python
import sys, math, struct
from scheme import STEPS, LIN, PAIRS, PAIR_OF, granule_addr, uses

OPT = dict(dump=0, stamps=0, prio_dnn=1, prio_cin=0)
for a in sys.argv[2:]:
    k, v = a.split("="); OPT[k] = int(v)
OUT = sys.argv[1]
NAME = "standalone__deep_cross_xdeepfm__recsys_kernel"

TAB = 0
OARR = 32768
OSTR = 60
V3L = OARR + 64 * OSTR
V3STR = 144
MISC = V3L + 32 * V3STR
MX_TAB, MX_W1, MX_W2, MX_V3 = MISC, MISC + 16, MISC + 32, MISC + 48
CNT = MISC + 64
ZCH = MISC + 80
CSUM = MISC + 96
R1 = MISC + 96 + 256
R1 = (R1 + 31) // 32 * 32
R1SZ = 676 * 56
R2 = R1 + R1SZ
IMG1, IMGT, IMGU = R2, R2 + 20800, R2 + 41600
RING = (R2 + 43264 + 63) // 64 * 64
RSZ = 10240
LDS_TOTAL = RING + 4 * RSZ
assert LDS_TOTAL <= 163840, LDS_TOTAL
CONSTROW = 32768

ORDER = ['u1', 'u3', 'u0', 'u2', 'u4', 'l0', 'u5', 'u15', 'u16', 's3', 's0', 's1', 'u10', 'u6', 'u7', 'u11', 'u12', 'u8', 'l1', 'u17', 'u9', 'u13', 'u14', 's2']

def f32bits(x): return struct.unpack("<I", struct.pack("<f", x))[0]
c_ = math.sqrt(2.0 / math.pi); k1 = 2 * c_ * math.log2(math.e); k2 = k1 * 0.044715
GS = k2 ** (1.0 / 3.0); GK = k1 / GS

L = []
def A(s):
    for ln in s.split("\n"):
        L.append("  " + ln.strip() if not ln.strip().endswith(":") else ln.strip())
def vr(a, n): return f"v[{a}:{a+n-1}]"
_lbl = [0]
def lbl(p="L"):
    _lbl[0] += 1; return f"{p}{_lbl[0]}"
nstamp = [0]
def stamp(i):
    if not OPT["stamps"]: return
    A(f"s_memtime s[92:93]\ns_waitcnt lgkmcnt(0)\nv_mov_b32 v10, s92\nv_mov_b32 v11, s94\nglobal_store_dword v11, v10, s[34:35] offset:{4*i}")

def dpp_max(regs):
    pad = "s_nop 1" if len(regs) == 1 else ("s_nop 0" if len(regs) == 2 else None)
    if pad: A(pad)
    for c in ["row_shr:1 row_mask:0xf", "row_shr:2 row_mask:0xf", "row_shr:4 row_mask:0xf", "row_shr:8 row_mask:0xf", "row_bcast:15 row_mask:0xa", "row_bcast:31 row_mask:0xc"]:
        for r in regs: A(f"v_max_u32_dpp v{r}, v{r}, v{r} {c} bank_mask:0xf")
        if pad: A(pad)

def pk_absmax(mx, mn, regs, first=True):
    regs = list(regs)
    i = 0
    if first:
        A(f"v_pk_maximum3_f16 v{mx}, v{regs[0]}, v{regs[1]}, v{regs[1]}\nv_pk_minimum3_f16 v{mn}, v{regs[0]}, v{regs[1]}, v{regs[1]}")
        i = 2
    while i < len(regs):
        A(f"v_pk_maximum3_f16 v{mx}, v{mx}, v{regs[i]}, v{regs[i+1]}\nv_pk_minimum3_f16 v{mn}, v{mn}, v{regs[i]}, v{regs[i+1]}")
        i += 2
def pk_absmax_fin(mx, mn):
    A(f"v_and_b32 v{mx}, 0x7fff7fff, v{mx}\nv_and_b32 v{mn}, 0x7fff7fff, v{mn}\nv_pk_max_u16 v{mx}, v{mx}, v{mn}")
    A(f"v_lshlrev_b32 v{mn}, 16, v{mx}\nv_max_u32 v{mx}, v{mx}, v{mn}")

def sw_arrive(cnt, va, vo):
    A(f"v_mov_b32 v{va}, {CNT + 4*cnt}\nv_mov_b32 v{vo}, 1\ns_waitcnt lgkmcnt(0)\ns_mov_b64 exec, 1\nds_add_u32 v{va}, v{vo}\ns_mov_b64 exec, -1")
def sw_wait(cnt, target, va, vo, st="s90"):
    l = lbl("SW")
    A(f"v_mov_b32 v{va}, {CNT + 4*cnt}\ns_mov_b32 s91, 0x40000")
    A(f"{l}:\nds_read_b32 v{vo}, v{va}\ns_sub_u32 s91, s91, 1\ns_cbranch_scc1 {l}_x\ns_waitcnt lgkmcnt(0)\nv_readfirstlane_b32 {st}, v{vo}\ns_cmp_lt_u32 {st}, {target}\ns_cbranch_scc1 {l}\n{l}_x:")

def dump_lds_and_end(nthreads, tidreg):
    l = lbl("DMP")
    A(f"s_cmp_lg_u32 s2, 0\ns_cbranch_scc1 END\nv_lshlrev_b32 v8, 4, v{tidreg}\ns_mov_b32 s90, 0")
    A(f"{l}:\nds_read_b128 v[12:15], v8\ns_waitcnt lgkmcnt(0)\nglobal_store_dwordx4 v8, v[12:15], s[34:35]\nv_add_u32 v8, {nthreads*16}, v8")
    A(f"s_add_u32 s90, s90, {nthreads*16}\ns_cmp_lt_u32 s90, {LDS_TOTAL}\ns_waitcnt vmcnt(0)\ns_cbranch_scc1 {l}\ns_branch END")

A(f"s_cmp_ge_u32 s2, 256\ns_cbranch_scc1 END")
if OPT["stamps"]: A("s_memtime s[96:97]")
A("s_load_dwordx16 s[16:31], s[0:1], 0\ns_load_dwordx2 s[32:33], s[0:1], 64")
if OPT["dump"] or OPT["stamps"]: A("s_load_dwordx2 s[34:35], s[0:1], 80")
A("s_getpc_b64 s[6:7]\nv_lshlrev_b32 v2, 7, v0\nv_min_u32 v2, CODE_LAST, v2\nv_lshrrev_b32 v1, 6, v0\nv_mov_b32 v3, v0")
A("v_and_b32 v0, 63, v0\nv_readfirstlane_b32 s3, v1\ns_lshr_b32 s4, s2, 3")
A("s_cmp_gt_u32 s3, CODE_WAVES\ns_cbranch_scc1 NOPF\nglobal_load_dword v250, v2, s[6:7]\nNOPF:")
if OPT["stamps"]: A("s_lshl_b32 s94, s2, 3\ns_add_u32 s94, s94, s3\ns_lshl_b32 s94, s94, 6")
A("s_cmp_ge_u32 s3, 4\ns_cbranch_scc1 DNN")

AB1, ABT, AL0, AL1 = 72, 160, 248, 252
ACC1, ACCG = 40, 56
XB = {f"X{i}": 20 + i for i in range(12)}
XB.update({f"B{i}": 32 + i for i in range(6)}); XB["X12"] = 38; XB["B6"] = 39
ZB = [12, 16]
ZSTEPS = [n for n in ORDER if n not in LIN]
SLOT = {n: i for i, n in enumerate([f"u{i}" for i in range(18)] + [f"s{i}" for i in range(4)])}
TBD = 40
W1F = 72
W2F = [128, 136]
DT = [144, 156]
PK = [168, 174]
VF, IF_ = 180, 188
VRAW = 196
A("v_and_b32 v1, 15, v0\nv_lshrrev_b32 v2, 4, v0")
A("s_lshl_b32 s5, s3, 10\nv_lshl_add_u32 v5, v0, 4, s5")
A("v_and_b32 v6, 1, v2\nv_xor_b32 v6, v6, v0\nv_lshl_add_u32 v6, v6, 4, s5")
A("s_mul_i32 s8, s3, 1352\nv_mul_u32_u24 v7, 52, v1\nv_lshl_add_u32 v7, v2, 4, v7\nv_add_u32 v7, s8, v7")
A("v_and_b32 v8, 31, v0\nv_cmp_eq_u32 vcc, 28, v8\nv_mov_b32 v9, 25\ns_nop 0\nv_cndmask_b32 v8, v8, v9, vcc\nv_lshlrev_b32 v9, 1, v8")
A("v_lshlrev_b32 v10, 7, v0")
A("s_waitcnt lgkmcnt(0)")
A("s_mov_b32 s36, s18\ns_and_b32 s37, s19, 0xffff\ns_mov_b32 s38, 32000\ns_mov_b32 s39, 0x20000")
A("s_mov_b32 s40, s20\ns_and_b32 s41, s21, 0xffff\ns_mov_b32 s42, 35152\ns_mov_b32 s43, 0x20000")
A("s_cmp_eq_u32 s3, 0\ns_cselect_b32 s44, s20, s24\ns_cselect_b32 s45, s21, s25\ns_mov_b32 s46, 346112\ns_cselect_b32 s46, 105456, s46\ns_cselect_b32 s9, 26, 43")
A("s_cmp_eq_u32 s3, 3\ns_cselect_b32 s44, s18, s44\ns_cselect_b32 s45, s19, s45\ns_cselect_b32 s46, 32000, s46\ns_cselect_b32 s9, 8, s9")
A("s_and_b32 s45, s45, 0xffff\ns_mov_b32 s47, 0x20000")
A("s_cmp_eq_u32 s3, 2\ns_cselect_b32 s10, 32, 0\ns_add_u32 s10, s10, s4\ns_mul_i32 s10, s10, s9\ns_lshl_b32 s10, s10, 7")
A("v_cmp_gt_u32 vcc, s9, v0\ns_and_saveexec_b64 s[12:13], vcc\nbuffer_load_dword v250, v10, s[44:47], s10 offen\ns_mov_b64 exec, -1")
A("global_load_ushort v4, v9, s[22:23]")
for j in range(8):
    if j == 0: A(f"buffer_load_dwordx4 {vr(TBD,4)}, v5, s[36:39], 0 offen")
    else: A(f"s_movk_i32 s11, {j*4096}\nbuffer_load_dwordx4 {vr(TBD+4*j,4)}, v5, s[36:39], s11 offen")
for j in range(7):
    so = "0"
    if j: A(f"s_movk_i32 s11, {j*5408}"); so = "s11"
    A(f"buffer_load_dwordx4 {vr(W1F+8*j,4)}, v7, s[40:43], {so} offen\nbuffer_load_dwordx4 {vr(W1F+8*j+4,4)}, v7, s[40:43], {so} offen offset:832")
A("v_lshlrev_b32 v10, 3, v2\nv_sub_u32 v10, v1, v10")
A("v_mov_b32 v12, 0xffff\nv_mov_b32 v13, 0xffff0000\nv_cmp_gt_u32 s[14:15], 10, v1")
for f in range(2):
    for e in range(4):
        d = IF_ + 4*f + e
        A(f"v_cmp_eq_u32 vcc, {2*e - 16*f}, v10\nv_cmp_eq_u32 s[12:13], {2*e + 1 - 16*f}, v10\ns_nop 0\nv_cndmask_b32 v{d}, 0, v12, vcc\nv_cndmask_b32 v{d}, v{d}, v13, s[12:13]")
        if f == 1: A(f"v_cndmask_b32 v{d}, 0, v{d}, s[14:15]")
WA = [212, 213, 214]; WAT = [215, 216]
A("v_lshrrev_b32 v10, 2, v1")
A("v_and_b32 v11, 1, v1\nv_mul_u32_u24 v11, 416, v11\nv_bfe_u32 v12, v1, 1, 1\nv_lshl_add_u32 v11, v12, 3, v11")
A("s_lshl_b32 s8, s3, 4\nv_add_u32 v11, s8, v11")
A("v_add_u32 v12, -1, v10\nv_mul_u32_u24 v12, v12, v10\nv_lshrrev_b32 v12, 1, v12\nv_add_u32 v12, v12, v2\nv_add_u32 v13, 18, v10")
A("v_cmp_eq_u32 vcc, v10, v2\nv_cmp_ge_u32 s[60:61], v10, v2\ns_nop 0\nv_cndmask_b32 v12, v12, v13, vcc")
A(f"v_mul_u32_u24 v12, 832, v12\nv_add3_u32 v{WA[0]}, v12, v11, s100")
A("v_lshl_add_u32 v12, v10, 2, v2\nv_add_u32 v12, 6, v12\nv_mul_u32_u24 v12, 832, v12\nv_add_u32 v12, v12, v11")
A("v_lshrrev_b32 v13, 1, v2\nv_add_u32 v14, 15, v13\nv_mul_u32_u24 v14, 832, v14\nv_and_b32 v15, 1, v2\nv_lshl_add_u32 v14, v15, 3, v14\nv_add_u32 v14, v14, v11")
A("v_cmp_eq_u32 vcc, 2, v10\nv_cmp_gt_u32 s[62:63], 10, v1\nv_cmp_eq_u32 s[12:13], 12, v1\nv_cndmask_b32 v12, v12, v14, vcc")
A(f"v_add_u32 v{WA[1]}, s100, v12")
A(f"v_mul_u32_u24 v13, 416, v13\nv_lshl_add_u32 v13, v15, 3, v13\nv_add_u32 v13, s8, v13\nv_add_u32 v13, {IMGU - 20800}, v13")
A(f"v_cndmask_b32 v{WAT[0]}, v{WA[1]}, v13, s[12:13]\ns_or_b64 s[66:67], s[62:63], s[12:13]")
A("v_add_u32 v12, 22, v10\nv_mov_b32 v14, 14\nv_cmp_eq_u32 vcc, v10, v2\ns_nop 1\nv_cndmask_b32 v12, v14, v12, vcc\nv_mul_u32_u24 v12, 832, v12")
A(f"v_lshlrev_b32 v14, 3, v2\nv_add_u32 v14, {17*832}, v14\nv_cmp_eq_u32 vcc, 2, v10\nv_cmp_gt_u32 s[64:65], 2, v2\ns_and_b64 vcc, vcc, s[64:65]\nv_cndmask_b32 v12, v12, v14, vcc")
A(f"v_add3_u32 v{WA[2]}, v12, v11, s100")
A("v_cmp_ge_u32 s[64:65], v10, v2\ns_and_b64 s[64:65], s[64:65], s[62:63]")
A(f"v_add_u32 v13, 832, v13\nv_cndmask_b32 v{WAT[1]}, v{WA[2]}, v13, s[12:13]\ns_or_b64 s[68:69], s[64:65], s[12:13]")
TRA = [217, 218, 219, 220]
A("v_bfe_u32 v10, v0, 2, 2\nv_and_b32 v11, 3, v0\nv_lshl_add_u32 v12, v2, 3, v10\ns_mul_i32 s8, s3, 56")
for jj in range(2):
    A(f"v_add_u32 v13, {4*jj}, v12\nv_add_u32 v14, -8, v13\nv_cmp_lt_u32 vcc, 25, v13\ns_nop 1\nv_cndmask_b32 v13, v13, v14, vcc")
    A(f"v_mul_u32_u24 v13, 1456, v13\nv_lshl_add_u32 v13, v11, 3, v13\nv_add_u32 v13, s8, v13\nv_add_u32 v{TRA[jj]}, {R1}, v13")
A(f"v_mul_u32_u24 v221, {V3STR}, v1\nv_lshl_add_u32 v221, v2, 5, v221")
for j in range(8):
    A(f"s_waitcnt vmcnt({14 + 7 - j})\nds_write_b128 v6, {vr(TBD+4*j,4)} offset:{TAB + j*4096}")
    pk_absmax(16, 17, range(TBD+4*j, TBD+4*j+4), first=(j == 0))
pk_absmax_fin(16, 17)
for j in range(7):
    A(f"s_waitcnt vmcnt({12 - 2*j})")
    pk_absmax(18, 19, range(W1F+8*j, W1F+8*j+8), first=(j == 0))
pk_absmax_fin(18, 19)
dpp_max([16, 18])
A("v_readlane_b32 s8, v16, 63\nv_readlane_b32 s9, v18, 63\ns_lshl_b32 s10, s3, 2")
A(f"v_mov_b32 v10, s10\nv_mov_b32 v16, s8\nv_mov_b32 v18, s9\nds_write_b32 v10, v16 offset:{MX_TAB}\nds_write_b32 v10, v18 offset:{MX_W1}")
stamp(1)
A("s_waitcnt lgkmcnt(0)\ns_barrier")
stamp(2)
if OPT["dump"] == 1: dump_lds_and_end(512, 3)
A(f"v_mov_b32 v10, {MISC}\nds_read_b128 v[12:15], v10\nds_read_b128 v[16:19], v10 offset:16\nds_read_b128 v[20:23], v10 offset:32\nds_read_b128 v[24:27], v10 offset:48")
for f in range(2):
    A(f"ds_read_b128 {vr(VRAW+8*f,4)}, v221 offset:{V3L + f*16*V3STR}\nds_read_b128 {vr(VRAW+8*f+4,4)}, v221 offset:{V3L + f*16*V3STR + 16}")
def w2reads(j, b):
    for f in range(2):
        for jj in range(2):
            A(f"ds_read_b64_tr_b16 {vr(b+4*f+2*jj,2)}, v{TRA[jj]} offset:{j*224 + f*32}")
w2reads(0, W2F[0])
A("s_waitcnt lgkmcnt(8)")
A("v_max3_u32 v12, v12, v13, v14\nv_max3_u32 v16, v16, v17, v18\nv_max3_u32 v20, v20, v21, v22\nv_max3_u32 v24, v24, v25, v26")
A("v_max_u32 v12, v12, v15\nv_max_u32 v16, v16, v19\nv_max_u32 v20, v20, v23\ns_nop 0")
A("v_readfirstlane_b32 s70, v12\nv_readfirstlane_b32 s71, v16\nv_readfirstlane_b32 s72, v20\nv_readfirstlane_b32 s73, v24\nv_readfirstlane_b32 s74, v27")
for s in range(70, 75): A(f"s_lshr_b32 s{s}, s{s}, 23\ns_max_u32 s{s}, s{s}, 40\ns_min_u32 s{s}, s{s}, 215")
A("s_sub_i32 s75, 133, s70\ns_sub_i32 s76, 140, s71")
A("s_sub_i32 s77, 261, s73\ns_sub_i32 s77, s77, s72\ns_add_i32 s77, s77, s75\ns_add_i32 s77, s77, s75")
A("s_sub_i32 s78, 262, s74\ns_sub_i32 s78, s78, s72\ns_add_i32 s78, s78, s75\ns_min_i32 s77, s77, s78")
A("s_sub_i32 s78, 155, s74\ns_min_i32 s77, s77, s78")
A("s_sub_i32 s79, s77, s75\ns_sub_i32 s78, s79, s75\ns_sub_i32 s80, s77, 14")
A("s_add_i32 s81, s77, s76\ns_add_i32 s81, s81, s75\ns_add_i32 s81, s81, s75\ns_sub_i32 s81, 0, s81")
A("s_add_i32 s82, s76, 127\ns_lshl_b32 s82, s82, 7\ns_mul_i32 s82, s82, 0x10001")
A("s_add_i32 s83, s75, 127\ns_lshl_b32 s83, s83, 7\ns_lshl_b32 s84, s83, 16")
for i in range(8): A(f"v_and_b32 v{IF_+i}, s82, v{IF_+i}")
A("v_mov_b32 v10, s78\nv_mov_b32 v11, s79\nv_cndmask_b32 v11, v10, v11, s[12:13]")
A("s_waitcnt lgkmcnt(4)")
for i in range(16): A(f"v_ldexp_f32 v{VRAW+i}, v{VRAW+i}, v{10 + i//8}")
for i in range(8): A(f"v_cvt_pk_bf16_f32 v{VF+i}, v{VRAW+2*i}, v{VRAW+2*i+1}")
A("v_cmp_gt_u32 s[86:87], 12, v1")
def job_mfma(F, G, D):
    F0, F1, G0, G1 = vr(F,4), vr(F+4,4), vr(G,4), vr(G+4,4)
    A(f"v_mfma_f32_16x16x32_bf16 {vr(D,4)}, {F0}, {G0}, 0\nv_mfma_f32_16x16x32_bf16 {vr(D+4,4)}, {F0}, {G1}, 0\nv_mfma_f32_16x16x32_bf16 {vr(D+8,4)}, {F1}, {G1}, 0")
    A(f"v_mfma_f32_16x16x32_bf16 {vr(D,4)}, {G0}, {F0}, {vr(D,4)}\nv_mfma_f32_16x16x32_bf16 {vr(D+4,4)}, {G0}, {F1}, {vr(D+4,4)}\nv_mfma_f32_16x16x32_bf16 {vr(D+8,4)}, {G1}, {F1}, {vr(D+8,4)}")
def job_out(D, P, j, isT):
    for i in range(6): A(f"v_cvt_pk_f16_f32 v{P+i}, v{D+2*i}, v{D+2*i+1}")
    off = j*64 + (20800 if isT else 0)
    ad = [WA[0], WAT[0], WAT[1]] if isT else WA
    mk = ["s[60:61]", "s[66:67]", "s[68:69]"] if isT else ["s[60:61]", "s[62:63]", "s[64:65]"]
    for t in range(3): A(f"s_mov_b64 exec, {mk[t]}\nds_write_b64 v{ad[t]}, {vr(P+2*t,2)} offset:{off}")
    A("s_mov_b64 exec, -1")
for j in range(7):
    if j == 6: A("s_cmp_ge_u32 s3, 2\ns_cbranch_scc1 JOBS_TAIL")
    job_mfma(W1F + 8*j, IF_, DT[0])
    if j > 0: job_out(DT[1], PK[1], j-1, True)
    b = W2F[j % 2]
    A(f"s_waitcnt lgkmcnt({3 if j > 0 else 0})" if j > 0 else "s_waitcnt lgkmcnt(0)")
    for i in range(4): A(f"v_cndmask_b32 v{b+4+i}, 0, v{b+4+i}, s[86:87]")
    if j < 6: w2reads(j+1, W2F[(j+1) % 2])
    else: A("s_nop 1")
    job_mfma(b, VF, DT[1])
    A("s_nop 1")
    job_out(DT[0], PK[0], j, False)
A("s_nop 7")
job_out(DT[1], PK[1], 6, True)
A("s_branch JOBS_DONE\nJOBS_TAIL:\ns_nop 7")
job_out(DT[1], PK[1], 5, True)
A("JOBS_DONE:")
stamp(3)
sw_arrive(0, 10, 11)
for i in range(32):
    A(f"v_dot2_f32_bf16 v{12 + (i%2)*2}, v{TBD+i}, s83, 0\nv_dot2_f32_bf16 v{13 + (i%2)*2}, v{TBD+i}, s84, 0")
    if i == 1: A("s_nop 0")
    if i > 0: A(f"v_cvt_pk_f16_f32 v{TBD+i-1}, v{12 + ((i-1)%2)*2}, v{13 + ((i-1)%2)*2}")
A(f"s_nop 2\nv_cvt_pk_f16_f32 v{TBD+31}, v14, v15")
A(f"v_lshrrev_b32 v2, 5, v0\nv_mul_u32_u24 v5, 416, v2\nv_lshl_add_u32 v5, v8, 4, v5\nv_add_u32 v5, {R2}, v5")
A(f"v_lshlrev_b32 v7, 4, v8\nv_add_u32 v7, {IMGU}, v7")
A("v_cmp_lt_u32 s[12:13], 31, v0\nv_mov_b32 v12, 0x05040100\nv_mov_b32 v13, 0x07060302")
A("v_cndmask_b32 v14, v12, v13, s[12:13]\nv_cndmask_b32 v15, v13, v12, s[12:13]")
A("v_lshlrev_b32 v4, 16, v4\nv_ldexp_f32 v4, v4, s80\nv_cndmask_b32 v4, v4, 0, s[12:13]\nv_cvt_pk_f16_f32 v4, v4, v4")
A("s_mov_b32 s85, 0x38003800")
sw_wait(0, 4, 10, 11)
stamp(4)
if OPT["dump"] == 2:
    A("v_lshl_add_u32 v3, s3, 6, v0")
    dump_lds_and_end(256, 3)
RAW1, RAWT, RAWU = 72, 160, 100
for c in range(7): A(f"ds_read_b128 {vr(RAW1+4*c,4)}, v5 offset:{(18+c)*832}")
for c in range(7): A(f"ds_read_b128 {vr(RAWT+4*c,4)}, v5 offset:{20800 + (18+c)*832}")
A(f"v_add_u32 v6, {R1}, v6")
for j in range(8): A(f"ds_write_b128 v6, {vr(TBD+4*j,4)} offset:{j*4096}" + ("\ns_waitcnt lgkmcnt(8)" if j == 0 else ""))
def specials(RAW, AB):
    S = lambda n, i: AB + 4*SLOT[n] + i
    d = lambda c, i: RAW + 4*c + i
    for e in range(3):
        for k in range(2):
            A(f"v_perm_b32 v{S(f's{e}',k)}, v{d(2*e+k,3)}, v{d(2*e+k,0)}, v14\nv_pk_mul_f16 v{S(f's{e}',k)}, v{S(f's{e}',k)}, s85")
        A(f"v_mov_b32 v{S(f's{e}',2)}, v{d(2*e+1,1)}\nv_mov_b32 v{S('s3',e)}, v{d(2*e,1)}")
        A(f"v_cndmask_b32 v16, v{d(2*e,0)}, v{d(2*e+1,0)}, s[12:13]\nv_cndmask_b32 v17, v{d(2*e,3)}, v{d(2*e+1,3)}, s[12:13]\nv_perm_b32 v{S(f's{e}',3)}, v17, v16, v15")
    A(f"v_pk_mul_f16 v{S('s3',3)}, v{d(6,0)}, s85")
specials(RAW1, AB1)
A(f"v_mov_b32 v16, 0x74007400\nv_lshlrev_b32 v17, 2, v0\nv_and_b32 v17, 28, v17\nv_add_u32 v17, {R1 + CONSTROW}, v17\nds_write_b32 v17, v16")
sw_arrive(1, 10, 11)
for c in range(4): A(f"ds_read_b128 {vr(RAWU+4*c,4)}, v7 offset:{c*416}")
for s in range(7): A(f"ds_read_b128 {vr(AB1+4*s,4)}, v5 offset:{s*832}")
specials(RAWT, ABT)
A("s_waitcnt lgkmcnt(7)")
for c in range(6):
    dst = AL0 + c
    A(f"v_perm_b32 v{dst}, v{RAWU+2*c+1}, v{RAWU+2*c}, v14")
A(f"v_mov_b32 v{AL1+2}, 0\nv_perm_b32 v{AL1+3}, v4, v{RAWU+12}, v14")
n = 0
for s in range(7, 18):
    A(f"ds_read_b128 {vr(AB1+4*s,4)}, v5 offset:{s*832}"); n += 1
    if n % 6 == 0: A("s_waitcnt lgkmcnt(6)")
for s in range(18):
    A(f"ds_read_b128 {vr(ABT+4*s,4)}, v5 offset:{20800 + s*832}"); n += 1
    if n % 6 == 0: A("s_waitcnt lgkmcnt(6)")
A("v_and_b32 v1, 3, v0\nv_lshlrev_b32 v1, 3, v1")
A(f"v_bfe_u32 v5, v0, 4, 1\ns_lshl_b32 s8, s3, 4\nv_add_u32 v5, s8, v5\nv_mul_u32_u24 v6, {OSTR}, v5\nv_add_u32 v6, {OARR}, v6")
A("v_bfe_u32 v7, v0, 2, 2\nv_lshrrev_b32 v8, 5, v0")
A("v_lshl_add_u32 v2, v7, 1, v6")
A("v_lshl_add_u32 v3, v7, 1, v8\nv_lshl_add_u32 v3, v3, 1, v6")
A("v_add_u32 v9, 24, v7\nv_add_u32 v10, 24, v8\nv_cmp_eq_u32 vcc, 2, v7\nv_cmp_eq_u32 s[14:15], 3, v7\nv_mov_b32 v11, 29\nv_cndmask_b32 v9, v9, v10, vcc\nv_cndmask_b32 v9, v9, v11, s[14:15]")
A("v_lshl_add_u32 v4, v9, 1, v6")
A(f"v_lshlrev_b32 v5, 2, v5\nv_add_u32 v5, {CSUM}, v5")
sw_wait(1, 4, 10, 11)
stamp(5)
if OPT["dump"] == 3:
    A("v_lshl_add_u32 v3, s3, 6, v0")
    dump_lds_and_end(256, 3)
def oread(t, dst):
    if t < 6: A(f"ds_read_u16 v{dst}, v2 offset:{8*t}")
    elif t == 6: A(f"ds_read_u16 v{dst}, v4")
    else: A(f"ds_read_u16 v{dst}, v3 offset:{16*(t-7)}")
def trread(t, src):
    A(f"v_xor_b32_e64 v{src}, v{src}, v1\nds_read_b64_tr_b16 {vr(XB[PAIRS[t][0]],2)}, v{src} offset:{R1}")
for t in range(10): oread(t, ACC1 + t)
A("s_waitcnt lgkmcnt(0)")
for t in range(10): trread(t, ACC1 + t)
A(f"v_add_u32 v2, {2*OSTR}, v2\nv_add_u32 v3, {2*OSTR}, v3\nv_add_u32 v4, {2*OSTR}, v4\ns_mov_b32 s8, 0")
if OPT["prio_cin"]: A(f"s_setprio {OPT['prio_cin']}")
A("s_waitcnt lgkmcnt(0)")
def zinstr(z, dst):
    k, a, b = z
    a, b = XB[a], XB[b]
    if k == "lo": return [f"v_pk_mul_f16 v{dst}, v{a}, v{b} op_sel:[0,0] op_sel_hi:[0,1]"]
    if k == "hi": return [f"v_pk_mul_f16 v{dst}, v{a}, v{b} op_sel:[1,0] op_sel_hi:[1,1]"]
    if k == "el": return [f"v_pk_mul_f16 v{dst}, v{a}, v{b}"]
    return [f"v_permlane32_swap_b32 v{a}, v{b}", "s_nop 0", f"v_pk_mul_f16 v{dst}, v{a}, v{b}"]
for i, z in enumerate(STEPS[ZSTEPS[0]]): A("\n".join(zinstr(z, ZB[0] + i)))
A("s_nop 1\n.p2align 3\nCLOOP:")
lastuse = {p: max(i for i, n_ in enumerate(ORDER) if p in uses(n_)) for p in PAIRS}
NS = len(ORDER)
zi = 0
first1 = firstg = True
pend_o = []
tmpq = [8, 9, 10, 11]
def nextz(i):
    j = i + 1
    while ORDER[j % NS] in LIN: j += 1
    return j % NS
free_at = {}
for p in PAIRS:
    lu = lastuse[p]
    if ORDER[lu] in LIN: free_at[p] = lu + 1
    else:
        j = lu - 1
        while ORDER[j] in LIN: j -= 1
        fa = j + 1
        fa = max([fa] + [i + 1 for i, n_ in enumerate(ORDER) if n_ in LIN and p in uses(n_)])
        free_at[p] = fa
for i, n_ in enumerate(ORDER):
    fill = []
    for p in PAIRS:
        if free_at[p] == i: fill.append(("tr", p))
        if free_at[p] - 2 == i: fill.append(("o", p))
    pre = []
    for kind, p in fill:
        if kind == "tr":
            r = [x for x in pend_o if x[0] == p][0]; pend_o.remove(r); tmpq.append(r[1])
            pre.append(("tr", p, r[1]))
    for kind, p in fill:
        if kind == "o":
            r = tmpq.pop(0); pend_o.append((p, r)); pre.append(("o", p, r))
    need_wait = any(k == "tr" for k, _, _ in pre) or i == 3 or i == NS - 2
    if n_ in LIN:
        ab = AL0 if n_ == "l0" else AL1
        A(f"v_mfma_f32_32x32x16_f16 {vr(ACCG,16)}, {vr(ab,4)}, {vr(XB[LIN[n_][0]],4)}, {'0' if firstg else vr(ACCG,16)}"); firstg = False
        if need_wait: A("s_waitcnt lgkmcnt(0)\ns_nop 0")
        for k, p, r in pre: (trread if k == "tr" else oread)(p, r)
        continue
    zb = ZB[zi % 2]; zn = ZB[(zi + 1) % 2]; zi += 1
    nz = [x for j, z in enumerate(STEPS[ORDER[nextz(i)]]) for x in zinstr(z, zn + j)]
    A(f"v_mfma_f32_32x32x16_f16 {vr(ACC1,16)}, {vr(AB1+4*SLOT[n_],4)}, {vr(zb,4)}, {'0' if first1 else vr(ACC1,16)}"); first1 = False
    A("\n".join(nz))
    A(f"v_mfma_f32_32x32x16_f16 {vr(ACCG,16)}, {vr(ABT+4*SLOT[n_],4)}, {vr(zb,4)}, {'0' if firstg else vr(ACCG,16)}"); firstg = False
    if need_wait: A("s_waitcnt lgkmcnt(0)\ns_nop 0")
    elif not pre: A("s_nop 0\ns_nop 0")
    for k, p, r in pre: (trread if k == "tr" else oread)(p, r)
assert not pend_o and zi % 2 == 0
A(f"v_add_u32 v2, {2*OSTR}, v2\nv_add_u32 v3, {2*OSTR}, v3\nv_add_u32 v4, {2*OSTR}, v4\ns_add_u32 s8, s8, 1\ns_nop 7")
A(f"v_mul_f32 v6, v{ACC1}, v{ACCG}\nv_mul_f32 v7, v{ACC1+1}, v{ACCG+1}")
for r in range(2, 13): A(f"v_fmac_f32 v{6 + r%2}, v{ACC1+r}, v{ACCG+r}")
A("v_add_f32 v6, v6, v7\ns_cmp_lt_u32 s8, 8\nds_add_f32 v5, v6\nv_add_u32 v5, 8, v5\ns_cbranch_scc1 CLOOP")
stamp(6)
A("global_load_ushort v20, v255, s[30:31]" if False else "v_mov_b32 v21, 0\nglobal_load_ushort v20, v21, s[30:31]")
sw_wait(3, 4, 10, 11)
A("v_and_b32 v1, 15, v0\ns_lshl_b32 s8, s3, 4\nv_add_u32 v1, s8, v1")
A(f"v_lshlrev_b32 v2, 2, v1\nds_read_b32 v12, v2 offset:{CSUM}")
A(f"v_lshrrev_b32 v3, 5, v1\nv_lshlrev_b32 v3, 8, v3\nv_and_b32 v4, 31, v1\nv_lshl_add_u32 v3, v4, 2, v3\nv_add_u32 v3, {RING + 9216}, v3")
for w in range(4): A(f"ds_read2_b32 {vr(22+2*w,2)}, v3 offset1:32" + (f"\nv_add_u32 v3, {RSZ}, v3" if w < 3 else ""))
A("s_waitcnt lgkmcnt(0)\nv_ldexp_f32 v12, v12, s81")
A("v_add_f32 v22, v22, v23\nv_add_f32 v24, v24, v25\nv_add_f32 v26, v26, v27\nv_add_f32 v28, v28, v29\nv_add_f32 v22, v22, v24\nv_add_f32 v26, v26, v28\nv_add_f32 v22, v22, v26\nv_add_f32 v12, v12, v22")
A("s_waitcnt vmcnt(0)\nv_lshlrev_b32 v20, 16, v20\nv_add_f32 v12, v12, v20\nv_cvt_pk_bf16_f32 v12, v12, v12")
A("s_lshl_b32 s8, s2, 6\nv_add_u32 v1, s8, v1\nv_lshlrev_b32 v1, 1, v1\ns_mov_b64 exec, 0xffff\nglobal_store_short v1, v12, s[32:33]")
if OPT["stamps"]:
    A("s_mov_b64 exec, -1"); stamp(7)
    A("v_mov_b32 v10, s96\nglobal_store_dword v11, v10, s[34:35]")
A("s_endpgm")

A("DNN:")
A("s_sub_u32 s5, s3, 4")
W3D, W2D = 128, 180
A("v_lshl_add_u32 v1, s5, 6, v0\nv_min_u32 v1, 168, v1\nv_lshlrev_b32 v2, 3, v1")
A("v_lshrrev_b32 v4, 2, v0\ns_lshl_b32 s8, s5, 4\nv_add_u32 v4, s8, v4\nv_and_b32 v5, 3, v0\nv_lshlrev_b32 v5, 4, v5\nv_min_u32 v5, 40, v5")
A(f"v_mul_u32_u24 v6, 52, v4\nv_add_u32 v6, v6, v5\nv_mul_u32_u24 v7, 56, v4\nv_add_u32 v7, v7, v5\nv_add_u32 v7, {R1}, v7")
for j in range(3):
    A(f"v_add_u32 v8, {j*64}, v0\nv_mul_u32_u24 v9, 0x1556, v8\nv_lshrrev_b32 v9, 16, v9\nv_mul_u32_u24 v10, 12, v9\nv_sub_u32 v10, v8, v10\nv_mul_u32_u24 v9, 832, v9\nv_lshl_add_u32 v{20+j}, v10, 4, v9")
A("s_mul_i32 s8, s5, 192")
for j in range(3): A(f"v_add_u32 v{20+j}, s8, v{20+j}")
A("v_lshrrev_b32 v8, 2, v0\nv_mul_u32_u24 v8, 832, v8\nv_and_b32 v9, 3, v0\nv_lshl_add_u32 v23, v9, 4, v8\nv_add_u32 v23, 768, v23")
A("s_mul_i32 s8, s5, 96\nv_add_u32 v8, s8, v0\nv_add_u32 v9, 64, v8\nv_add_u32 v10, 352, v0\nv_cmp_gt_u32 vcc, 32, v0\nv_lshlrev_b32 v8, 1, v8\ns_nop 0\nv_cndmask_b32 v9, v10, v9, vcc\nv_lshlrev_b32 v9, 1, v9")
A(f"s_mul_i32 s95, s5, {RSZ}\ns_add_u32 s95, s95, {RING}\ns_mul_i32 s98, s5, 13312")
A("s_waitcnt lgkmcnt(0)")
A("s_load_dwordx8 s[40:47], s[22:23], 104\ns_load_dwordx4 s[48:51], s[22:23], 136\ns_load_dword s52, s[22:23], 152")
A("s_add_u32 s36, s20, 70304\ns_addc_u32 s37, s21, 0\ns_and_b32 s37, s37, 0xffff\ns_mov_b32 s38, 35152\ns_mov_b32 s39, 0x20000")
A("s_add_u32 s8, s20, 35152\ns_addc_u32 s9, s21, 0\ns_and_b32 s9, s9, 0xffff\ns_mov_b32 s10, 35152\ns_mov_b32 s11, 0x20000")
A("s_mov_b32 s12, s24\ns_and_b32 s13, s25, 0xffff\ns_mov_b32 s14, 346112\ns_mov_b32 s15, 0x20000")
A("s_cmp_eq_u32 s5, 3\ns_cbranch_scc1 IDXLD")
for h in range(26):
    so = "0"
    if h >= 3:
        if h % 3 == 0: A(f"s_movk_i32 s6, {h*1352}" if h*1352 < 32768 else f"s_mov_b32 s6, {h*1352}")
        so = "s6"
    A(f"buffer_load_dwordx2 {vr(W3D+2*h,2)}, v2, s[36:39], {so} offen offset:{(h%3)*1352}")
A("s_branch LD2\nIDXLD:")
A("s_lshl_b32 s6, s2, 6\nv_add_u32 v10, s6, v0\nv_mul_u32_u24 v10, 104, v10")
for j in range(6): A(f"global_load_dwordx4 {vr(W3D+4*j,4)}, v10, s[16:17] offset:{16*j}")
A(f"global_load_dwordx2 {vr(W3D+24,2)}, v10, s[16:17] offset:96")
A("v_lshlrev_b32 v10, 1, v0\nv_min_u32 v11, 26, v10\nglobal_load_ushort v12, v10, s[22:23]\nglobal_load_ushort v13, v11, s[22:23] offset:128")
A("LD2:")
for k in range(11):
    so = "0"
    if k: A(f"s_mov_b32 s6, {k*3328}"); so = "s6"
    A(f"buffer_load_dwordx4 {vr(W2D+4*k,4)}, v6, s[8:11], {so} offen")
A("global_load_ushort v24, v8, s[26:27]\nglobal_load_ushort v25, v9, s[26:27]\nglobal_load_ushort v26, v8, s[28:29]\nglobal_load_ushort v27, v9, s[28:29]")
def dma(j):
    n = 0
    if j % 4 == 0:
        A(f"s_add_u32 m0, s95, 9216\ns_nop 0\nbuffer_load_dwordx4 v23, s[12:15], s98 offen lds"); n += 1
    for i in range(3):
        A(f"s_add_u32 m0, s95, {(j%3)*3072 + i*1024}\ns_nop 0\nbuffer_load_dwordx4 v{20+i}, s[12:15], s98 offen lds"); n += 1
    A("s_add_u32 s98, s98, 13312")
    if j >= 22: A("s_cmp_ge_u32 s98, 346112\ns_cselect_b32 s98, 0, s98")
    return n
nd = sum(dma(j) for j in range(3))
YOUNG = nd + 4
A("s_cmp_eq_u32 s5, 3\ns_cbranch_scc1 IDXPR")
A("s_waitcnt lgkmcnt(0)")
for e in range(4):
    A(f"v_lshl_add_u32 v10, v1, 2, {e}\nv_mul_u32_u24 v11, 2521, v10\nv_lshrrev_b32 v11, 16, v11\nv_mul_u32_u24 v12, 26, v11\nv_sub_u32 v12, v10, v12\nv_mul_u32_u24 v12, {V3STR}, v12\nv_lshl_add_u32 v{28+e}, v11, 2, v12\nv_mov_b32 v{32+e}, 0")
for h in range(26):
    d = 40 + h // 2
    if h % 2 == 0: A(f"s_and_b32 s6, s{d}, 0xffff\ns_lshl_b32 s7, s{d}, 16")
    else: A(f"s_lshr_b32 s6, s{d}, 16\ns_and_b32 s7, s{d}, 0xffff0000")
    A(f"s_waitcnt vmcnt({min(63, YOUNG + 11 + 25 - h)})")
    A(f"v_dot2c_f32_bf16 v32, s6, v{W3D+2*h}\nv_dot2c_f32_bf16 v33, s7, v{W3D+2*h}\nv_dot2c_f32_bf16 v34, s6, v{W3D+2*h+1}\nv_dot2c_f32_bf16 v35, s7, v{W3D+2*h+1}")
A("s_nop 2")
for e in range(4): A(f"ds_write_b32 v{28+e}, v{32+e} offset:{V3L}")
A("v_max3_f32 v16, |v32|, |v33|, |v34|\nv_max_f32 v16, |v35|, v16")
A("s_branch P2\nIDXPR:")
A(f"v_mov_b32 v28, 0\nv_mov_b32 v29, 0\nv_mov_b32 v30, 0\nv_mov_b32 v31, 0\nv_lshlrev_b32 v10, 2, v0")
A(f"ds_write_b32 v10, v28 offset:{CSUM}\nv_and_b32 v11, 28, v10\nds_write_b32 v11, v28 offset:{CNT}")
A(f"v_and_b32 v11, 31, v0\nv_mul_u32_u24 v11, {V3STR}, v11\nds_write_b64 v11, v[28:29] offset:{V3L+104}\nds_write_b128 v11, v[28:31] offset:{V3L+112}")
A(f"s_waitcnt vmcnt({YOUNG + 11})")
A(f"v_lshlrev_b32 v12, 16, v12\nv_lshlrev_b32 v13, 16, v13\nv_add_u32 v11, -26, v0\nv_cmp_gt_u32 vcc, 26, v11\ns_and_saveexec_b64 s[6:7], vcc\nds_write_b32 v10, v12 offset:{V3L + 28*V3STR - 104}\ns_mov_b64 exec, -1")
A("v_max_f32 v16, |v12|, |v13|")
A(f"v_mul_u32_u24 v10, {OSTR}, v0\nv_add_u32 v10, {OARR}, v10\ns_mov_b32 s6, 0x00100010")
for d in range(13):
    A(f"v_lshl_or_b32 v{W3D+d}, v{W3D+2*d+1}, 16, v{W3D+2*d}\nv_lshlrev_b32 v11, 1, v{W3D+d}\nv_and_b32 v11, s6, v11\nv_lshl_or_b32 v{W3D+d}, v{W3D+d}, 5, v11")
A(f"v_and_b32 v{W3D+14}, 0xffff, v{W3D+1}\nv_or_b32 v{W3D+14}, 0x80000000, v{W3D+14}")
for d in range(0, 12, 2): A(f"ds_write2_b32 v10, v{W3D+d}, v{W3D+d+1} offset0:{d} offset1:{d+1}")
A(f"ds_write2_b32 v10, v{W3D+12}, v{W3D} offset0:12 offset1:13\nds_write_b32 v10, v{W3D+14} offset:56")
A("P2:")
for k in range(11):
    A(f"s_waitcnt vmcnt({YOUNG + 10 - k})\nds_write_b128 v7, {vr(W2D+4*k,4)} offset:{k*3584}")
    pk_absmax(18, 19, range(W2D+4*k, W2D+4*k+4), first=(k == 0))
pk_absmax_fin(18, 19)
dpp_max([16, 18])
A("v_readlane_b32 s6, v16, 63\nv_readlane_b32 s7, v18, 63\ns_lshl_b32 s90, s5, 2")
A(f"v_mov_b32 v10, s90\nv_mov_b32 v16, s6\nv_mov_b32 v18, s7\nds_write_b32 v10, v16 offset:{MX_V3}\nds_write_b32 v10, v18 offset:{MX_W2}")
A("v_lshrrev_b32 v1, 5, v0\nv_bfe_u32 v2, v0, 2, 2\nv_lshl_add_u32 v2, v1, 3, v2\nv_bfe_u32 v4, v0, 4, 1\nv_and_b32 v5, 3, v0\nv_lshlrev_b32 v5, 3, v5\nv_lshl_add_u32 v5, v4, 5, v5")
A("v_mul_u32_u24 v6, 192, v2\nv_add3_u32 v6, v6, v5, s95\nv_lshl_add_u32 v7, v2, 6, v5\nv_add_u32 v7, s95, v7")
A(f"v_and_b32 v2, 31, v0\nv_mul_u32_u24 v2, {OSTR}, v2\ns_lshl_b32 s6, s5, 1\nv_add_u32 v2, s6, v2\nv_lshlrev_b32 v4, 4, v1")
stamp(1)
A("s_waitcnt lgkmcnt(0)\ns_barrier")
stamp(2)
if OPT["dump"] == 1: dump_lds_and_end(512, 3)
if OPT["dump"] in (2, 3): A("s_waitcnt vmcnt(0)\ns_branch END")
if OPT["prio_dnn"]: A(f"s_setprio {OPT['prio_dnn']}")
ACC = lambda t, m: 128 + 32*t + 16*m
WF = [64, 80]; XF = [96, 104]; OT = [112, 114]
def d_oread(j):
    for m in range(2): A(f"ds_read_u16 v{OT[j%2]+m}, v2 offset:{OARR + m*32*OSTR + 2*j}")
def d_gather(j):
    for m in range(2): A(f"v_xor_b32 v{OT[j%2]+m}, v{OT[j%2]+m}, v4\nds_read_b128 {vr(XF[j%2]+4*m,4)}, v{OT[j%2]+m} offset:{TAB}")
def d_tr(j):
    out = []
    for t in range(3):
        for jj in range(2): out.append(f"ds_read_b64_tr_b16 {vr(WF[j%2]+4*t+2*jj,2)}, v6 offset:{(j%3)*3072 + jj*768 + t*64}")
    if j % 4 == 0:
        for jj in range(2): out.append(f"ds_read_b64_tr_b16 {vr(WF[j%2]+12+2*jj,2)}, v7 offset:{9216 + jj*256}")
    return out
ndma = lambda j: 0 if j > 25 else (4 if j % 4 == 0 else 3)
d_oread(0); d_oread(1)
A(f"s_waitcnt lgkmcnt(2)")
d_gather(0)
A(f"s_waitcnt vmcnt({ndma(1) + ndma(2)})")
A("\n".join(d_tr(0)))
for j in range(26):
    A("s_waitcnt lgkmcnt(0)")
    if j + 3 < 26: dma(j + 3)
    M = []
    for t in range(3):
        for m in range(2):
            M.append(f"v_mfma_f32_32x32x16_bf16 {vr(ACC(t,m),16)}, {vr(WF[j%2]+4*t,4)}, {vr(XF[j%2]+4*m,4)}, {'0' if j == 0 else vr(ACC(t,m),16)}")
    A(M[0])
    if j + 1 < 26:
        d_gather(j + 1)
        if j + 2 < 26: d_oread(j + 2)
    A(M[1])
    if j + 1 < 26:
        A(f"s_waitcnt vmcnt({ndma(j+2) + ndma(j+3)})")
        tr = d_tr(j + 1)
    else: tr = []
    for i in range(2, 6):
        A("\n".join(tr[2*(i-2):2*(i-2)+2])) if tr[2*(i-2):2*(i-2)+2] else None
        A(M[i])
    if j % 4 == 0:
        if j == 24: A("s_cmp_ge_u32 s5, 2\ns_cbranch_scc1 SKIP12")
        for m in range(2):
            A(f"v_mfma_f32_32x32x16_bf16 {vr(ACC(3,m),16)}, {vr(WF[j%2]+12,4)}, {vr(XF[j%2]+4*m,4)}, {'0' if j == 0 else vr(ACC(3,m),16)}")
        if j == 24: A("SKIP12:")
stamp(3)
A("v_lshl_add_u32 v8, v0, 4, s95\ns_nop 4")
for q in range(8): A(f"ds_write_b128 v8, {vr(ACC(3,0)+4*q,4)} offset:{q*1024}")
A(f"s_mov_b32 s40, {f32bits(GS):#x}\ns_mov_b32 s41, {f32bits(GK):#x}\ns_mov_b32 s42, 0x71800000")
for i in range(4): A(f"v_lshlrev_b32 v{24+i}, 16, v{24+i}")
A("v_rcp_f32 v26, v26\nv_rcp_f32 v27, v27\nv_mul_f32 v24, s40, v24\nv_mul_f32 v25, s40, v25\nv_mul_f32 v26, s40, v26\nv_mul_f32 v27, s40, v27")
A("v_med3_f32 v26, v26, -s42, s42\nv_med3_f32 v27, v27, -s42, s42")
A("v_lshl_add_u32 v9, v0, 2, s95\nds_write2st64_b32 v9, v24, v25 offset0:32 offset1:33\nds_write2st64_b32 v9, v26, v27 offset0:34 offset1:35")
sw_arrive(2, 10, 11)
A("v_add_u32 v9, s95, v4")
CB = [64, 96]
def cread(t, b, qs=range(4)):
    for i, q in enumerate(qs): A(f"ds_read_b128 {vr(b+4*i,4)}, v9 offset:{8192 + t*128 + q*32}\nds_read_b128 {vr(b+16+4*i,4)}, v9 offset:{8192 + 512 + t*128 + q*32}")
def gelu(accs, sbs, c1s, outs, first):
    n = len(accs)
    for g in range(0, n, 4):
        R = range(g, g + 4)
        T = lambda i: 40 + (i % 4)
        for i in R: A(f"v_fma_f32 v{accs[i]}, v{accs[i]}, s40, v{sbs[i]}")
        for i in R: A(f"v_fma_f32 v{T(i)}, v{accs[i]}, v{accs[i]}, s41")
        for i in R: A(f"v_mul_f32 v{T(i)}, v{T(i)}, v{accs[i]}")
        for i in R: A(f"v_exp_f32 v{T(i)}, -v{T(i)}")
        for i in R: A(f"v_fma_f32 v{T(i)}, v{T(i)}, v{c1s[i]}, v{c1s[i]}")
        for i in R: A(f"v_rcp_f32 v{T(i)}, v{T(i)}")
        for i in R:
            o = outs[i % 2]
            A(f"v_mul_f32 v{o}, v{accs[i]}, v{T(i)}" if (first and i < 2) else f"v_fmac_f32 v{o}, v{accs[i]}, v{T(i)}")
cread(0, CB[0])
for t in range(3):
    A("s_waitcnt lgkmcnt(0)")
    if t < 2: cread(t + 1, CB[(t+1) % 2])
    b = CB[t % 2]
    for m in range(2):
        gelu([ACC(t,m)+r for r in range(16)], [b+r for r in range(16)], [b+16+r for r in range(16)], [44+2*m, 45+2*m], t == 0)
stamp(4)
sw_wait(2, 4, 10, 11)
A(f"s_lshl_b32 s6, s5, 11\ns_add_u32 s6, s6, {RING}\nv_lshl_add_u32 v8, v0, 4, s6\ns_and_b32 s6, s5, 1\ns_lshl_b32 s6, s6, 6\nv_add_u32 v9, s6, v9")
for w in range(4):
    for i in range(2): A(f"ds_read_b128 {vr(128+8*w+4*i,4)}, v8 offset:{w*RSZ + i*1024}")
cread(3, CB[1], range(2))
A("s_waitcnt lgkmcnt(0)")
for r in range(8): A(f"v_add_f32 v{128+r}, v{128+r}, v{136+r}\nv_add_f32 v{144+r}, v{144+r}, v{152+r}\nv_add_f32 v{128+r}, v{128+r}, v{144+r}")
gelu([128+r for r in range(8)], [CB[1]+r for r in range(8)], [CB[1]+16+r for r in range(8)], [48, 49], True)
A("v_add_f32 v44, v44, v45\nv_add_f32 v46, v46, v47\nv_add_f32 v48, v48, v49\ns_cmp_ge_u32 s5, 2\ns_cselect_b32 s6, 0, 1.0\ns_cselect_b32 s7, 1.0, 0")
A("v_fmac_f32 v44, s6, v48\nv_fmac_f32 v46, s7, v48\nv_lshl_add_u32 v9, v0, 2, s95\nds_write2st64_b32 v9, v44, v46 offset0:36 offset1:37")
sw_arrive(3, 10, 11)
if OPT["stamps"]:
    stamp(7)
    A("v_mov_b32 v10, s96\nglobal_store_dword v11, v10, s[34:35]")
A("s_waitcnt lgkmcnt(0)")
A("END:\ns_endpgm")

hdr = open("standalone__deep_cross_xdeepfm__recsys.s.ref").read().split("; @launch")[0]
txt = hdr + f"; @launch grid=(256,1,1) block=(512,1,1) lds={LDS_TOTAL}\n"
txt += f""".amdgcn_target "amdgcn-amd-amdhsa--gfx950"
.text
.globl {NAME}
.p2align 8
.type {NAME},@function
{NAME}:
"""
body = "\n".join(L).replace("s100", "s99")
body = body.replace("  s_cmp_ge_u32 s3, 4\n", f"  s_mov_b32 s99, {R2}\n  s_cmp_ge_u32 s3, 4\n", 1)
txt += body + "\n"
txt += f""".section .rodata,"a"
.p2align 6
.amdhsa_kernel {NAME}
  .amdhsa_next_free_vgpr 256
  .amdhsa_next_free_sgpr 102
  .amdhsa_accum_offset 256
  .amdhsa_group_segment_fixed_size 0
  .amdhsa_kernarg_size 88
  .amdhsa_user_sgpr_count 2
  .amdhsa_user_sgpr_kernarg_segment_ptr 1
  .amdhsa_system_sgpr_workgroup_id_x 1
.end_amdhsa_kernel
"""
import subprocess, re
def fin(size): return txt.replace("CODE_LAST", str(size - 128)).replace("CODE_WAVES", str((size - 1) // 8192))
open(OUT, "w").write(fin(24000))
r = subprocess.run(["clang", "-x", "assembler", "-target", "amdgcn-amd-amdhsa", "-mcpu=gfx950", "-c", OUT, "-o", "_gen.o"], capture_output=True, text=True)
if r.returncode: print(r.stderr); sys.exit(1)
o = subprocess.run(["llvm-objdump", "-h", "_gen.o"], capture_output=True, text=True).stdout
size = int(re.search(r"\.text\s+([0-9a-f]+)", o).group(1), 16)
assert (size - 1) // 8192 <= 3
open(OUT, "w").write(fin(size)); print("code bytes", size)
import json
json.dump(dict(TAB=TAB, OARR=OARR, OSTR=OSTR, V3L=V3L, V3STR=V3STR, MISC=MISC, CNT=CNT, CSUM=CSUM, R1=R1, R2=R2, IMGU=IMGU, RING=RING, RSZ=RSZ, LDS=LDS_TOTAL), open("ldsmap.json", "w"))
print("LDS", LDS_TOTAL, "lines", len(L))
```
